```python
import torch

def _softmax(x, axis=-1):
    return torch.softmax(x, dim=axis)
def _gelu(x):
    return torch.nn.functional.gelu(x, approximate="tanh")
def _silu(x):
    return torch.nn.functional.silu(x)
def _sigmoid(x):
    return torch.sigmoid(x)
def _layernorm(x, axis=-1, eps=1e-5):
    m = x.mean(dim=axis, keepdim=True)
    v = x.var(dim=axis, keepdim=True, unbiased=False)
    return (x - m) / torch.sqrt(v + eps)
def _scatter_add(tgt, idx, src, axis=0):
    return tgt.clone().index_add_(axis, idx, src)
def _segment_sum(src, seg, n):
    out = torch.zeros((n,) + src.shape[1:], dtype=src.dtype)
    return out.index_add_(0, seg, src)
def _pad(x, pw):
    flat = tuple(v for pair in reversed(pw) for v in pair)
    return torch.nn.functional.pad(x, flat)

kernel_name = 'gated_mix__softmax_full_mha__softmax_full_mha__prompt'

def setup_inputs():

    _w = (lambda a: (lambda t: t.to(torch.bfloat16) if t.is_floating_point() else t)(torch.as_tensor(a)))
    def _A_setup():
        B, S, D = 1, 2048, 512
        return {
            "x": _w((lambda *s: torch.randn(*s, dtype=torch.bfloat16) * 0.05)(B, S, D)),
            "wqkv": _w((lambda *s: torch.randn(*s, dtype=torch.bfloat16) * 0.8)(D, 3 * D)),
            "wo": _w((lambda *s: torch.randn(*s, dtype=torch.bfloat16) * 0.05)(D, D)),
        }
    _A_in = _A_setup()

    def _B_setup():
        B, S, D = 1, 2048, 512
        return {
            "x": _w((lambda *s: torch.randn(*s, dtype=torch.bfloat16) * 0.05)(B, S, D)),
            "wqkv": _w((lambda *s: torch.randn(*s, dtype=torch.bfloat16) * 0.8)(D, 3 * D)),
            "wo": _w((lambda *s: torch.randn(*s, dtype=torch.bfloat16) * 0.05)(D, D)),
        }
    _B_in = _B_setup()

    return {
        "A_x": _A_in["x"],
        "A_wqkv": _A_in["wqkv"],
        "A_wo": _A_in["wo"],
        "B_x": _B_in["x"],
        "B_wqkv": _B_in["wqkv"],
        "B_wo": _B_in["wo"],
        "gate_w": _w((lambda *s: torch.randn(*s, dtype=torch.bfloat16) * 0.05)(512) * 16.0),
    }

def reference(A_x, A_wqkv, A_wo, B_x, B_wqkv, B_wo, gate_w):
    def _A_ref(x, wqkv, wo):
        B, S, D = x.shape
        H = 32; Dh = D // H
        qkv = (lambda x, *d: x.permute(*d))((x @ wqkv).reshape(B, S, 3, H, Dh), 2, 0, 3, 1, 4)
        q, k, v = qkv[0], qkv[1], qkv[2]
        scale = Dh ** -0.5
        scores = torch.einsum("bhqd,bhkd->bhqk", q, k) * scale
        p = _softmax(scores, axis=-1)
        o = torch.einsum("bhqk,bhkd->bhqd", p, v)
        return (lambda x, *d: x.permute(*d))(o, 0, 2, 1, 3).reshape(B, S, D) @ wo

    def _B_ref(x, wqkv, wo):
        B, S, D = x.shape
        H = 32; Dh = D // H
        qkv = (lambda x, *d: x.permute(*d))((x @ wqkv).reshape(B, S, 3, H, Dh), 2, 0, 3, 1, 4)
        q, k, v = qkv[0], qkv[1], qkv[2]
        scale = Dh ** -0.5
        scores = torch.einsum("bhqd,bhkd->bhqk", q, k) * scale
        p = _softmax(scores, axis=-1)
        o = torch.einsum("bhqk,bhkd->bhqd", p, v)
        return (lambda x, *d: x.permute(*d))(o, 0, 2, 1, 3).reshape(B, S, D) @ wo

    x = A_x
    g = _sigmoid((x * gate_w).sum(-1, keepdims=True))
    a = _A_ref(x, A_wqkv, A_wo)
    b = _B_ref(x, B_wqkv, B_wo)
    return g * a + (1 - g) * b
```

```python
import subprocess, sys

HDR = '.amdgcn_target "amdgcn-amd-amdhsa--gfx950"\n.text\n'

def kernel(name, body, iters, nvgpr=128, pre="", block=256, nagpr=0):
    s = f""".globl {name}
.p2align 8
.type {name},@function
{name}:
    s_load_dwordx2 s[4:5], s[0:1], 0
    s_load_dwordx2 s[6:7], s[0:1], 8
    s_waitcnt lgkmcnt(0)
    s_mov_b32 s8, s4
    s_mov_b32 s9, s5
    s_mov_b32 s10, 0x4000000
    s_mov_b32 s11, 0x20000
    s_mov_b32 s12, s6
    s_mov_b32 s13, s7
    s_mov_b32 s14, 0x100000
    s_mov_b32 s15, 0x20000
    v_lshrrev_b32 v1, 6, v0
    s_nop 0
    v_readfirstlane_b32 s16, v1
    s_mul_i32 s17, s2, {block//64}
    s_add_u32 s17, s17, s16
    s_lshl_b32 s17, s17, 3
    v_lshlrev_b32 v1, 4, v0
"""
    for r in range(4, nvgpr, 4):
        s += f"    buffer_load_dwordx4 v[{r}:{r+3}], v1, s[8:11], 0 offen offset:{(r*16)%4096}\n"
    s += "    s_waitcnt vmcnt(0)\n"
    s += pre
    s += f"""    s_mov_b32 s20, {iters}
    s_barrier
    s_memtime s[22:23]
    s_memrealtime s[24:25]
    s_waitcnt lgkmcnt(0)
.p2align 4
L_{name}:
"""
    s += body
    s += f"""    s_sub_u32 s20, s20, 1
    s_cmp_lg_u32 s20, 0
    s_cbranch_scc1 L_{name}
    s_nop 15
    s_nop 15
    s_memtime s[26:27]
    s_memrealtime s[28:29]
    s_waitcnt lgkmcnt(0)
    s_sub_u32 s26, s26, s22
    s_sub_u32 s28, s28, s24
    v_mov_b32 v2, s26
    v_mov_b32 v3, s28
    v_mov_b32 v1, s17
    v_cmp_eq_u32 vcc, 0, v0
    v_and_b32 v0, 63, v0
    v_cmp_eq_u32 vcc, 0, v0
    s_and_saveexec_b64 s[30:31], vcc
    buffer_store_dwordx2 v[2:3], v1, s[12:15], 0 offen
    s_waitcnt vmcnt(0)
    s_endpgm
"""
    acc = (nvgpr + 3)//4*4
    kd = f""".section .rodata,"a"
.p2align 6
.amdhsa_kernel {name}
  .amdhsa_next_free_vgpr {acc+nagpr}
  .amdhsa_next_free_sgpr 96
  .amdhsa_accum_offset {acc}
  .amdhsa_group_segment_fixed_size 0
  .amdhsa_kernarg_size 16
  .amdhsa_user_sgpr_count 2
  .amdhsa_user_sgpr_kernarg_segment_ptr 1
  .amdhsa_system_sgpr_workgroup_id_x 1
  .amdhsa_float_denorm_mode_32 3
.end_amdhsa_kernel
.text
"""
    md = f"""  - .name: {name}
    .symbol: {name}.kd
    .kernarg_segment_size: 16
    .kernarg_segment_align: 8
    .group_segment_fixed_size: 0
    .private_segment_fixed_size: 0
    .wavefront_size: 64
    .sgpr_count: 96
    .vgpr_count: {acc+nagpr}
    .max_flat_workgroup_size: 1024
    .args:
      - {{.name: kernargs, .size: 16, .offset: 0, .value_kind: by_value}}
"""
    return s + kd, md

def build(fname, kernels):
    src = HDR + "".join(k[0] for k in kernels)
    src += ".amdgpu_metadata\n---\namdhsa.version: [1, 2]\namdhsa.kernels:\n" + "".join(k[1] for k in kernels) + "...\n.end_amdgpu_metadata\n"
    open(fname + ".s", "w").write(src)
    r = subprocess.run(["clang", "-x", "assembler", "-target", "amdgcn-amd-amdhsa", "-mcpu=gfx950", fname + ".s", "-o", fname + ".co"], capture_output=True, text=True)
    if r.returncode:
        print(r.stderr); sys.exit(1)
```

```python
from mbgen import *
ks = []
names = []
import sys
BLK = int(sys.argv[1])
def add(name, body, iters=200, nv=128, U=16, nagpr=0, pre=""):
    ks.append(kernel(name, body*U, iters, nvgpr=nv, block=BLK, nagpr=nagpr, pre=pre)); names.append(name)

def tile(extra, every=4):
    b = ""
    for i in range(16):
        b += f"    v_exp_f32 v{16+i}, v{16+i}\n"
        if i % every == every-1: b += "    " + extra.replace("@", str(i)) + "\n"
    return b
pre = "    v_and_b32 v3, 63, v0\n    v_lshlrev_b32 v3, 4, v3\n"
add("e16", tile("; none"), pre=pre)
add("e16_smov4", tile("s_mov_b32 s40, s41"), pre=pre)
add("e16_smov8", tile("s_mov_b32 s40, s41", 2), pre=pre)
add("e16_smov16", tile("s_mov_b32 s40, s41", 1), pre=pre)
add("e16_exec4", tile("s_mov_b64 exec, -1"), pre=pre)
add("e16_nop4", tile("s_nop 0"), pre=pre)
add("e16_nop16", tile("s_nop 0", 1), pre=pre)
add("e16_wait4", tile("s_waitcnt lgkmcnt(0)"), pre=pre)
add("e16_wait16", tile("s_waitcnt lgkmcnt(0)", 1), pre=pre)
add("e16_ds4", tile("ds_read_b128 v[64:67], v3 offset:1024"), pre=pre)
add("e16_ds8", tile("ds_read_b128 v[64:67], v3 offset:1024", 2), pre=pre)
add("e16_ds4w", tile("ds_read_b128 v[64:67], v3 offset:1024\n    s_waitcnt lgkmcnt(1)"), pre=pre)
add("e16_ds4x", tile("s_mov_b64 exec, s[40:41]\n    ds_read_b128 v[64:67], v3 offset:1024\n    s_mov_b64 exec, -1"), pre=pre+"    s_mov_b32 s40, 0xffff\n    s_mov_b32 s41, 0xffff\n")
add("e16_gl2", tile("buffer_load_dwordx4 v[64:67], v3, s[8:11], 0 offen\n    s_waitcnt vmcnt(8)", 8), pre=pre)
build("mb4_%d" % BLK, ks)
print(" ".join(names))
```

```python
from mbgen import *
import sys
BLK = int(sys.argv[1])
NW = BLK // 64
ks = []; names = []
REG = 2 << 20
def pat(kind):
    p = "    v_and_b32 v3, 63, v0\n"
    if kind == "lin":
        p += "    v_lshlrev_b32 v3, 4, v3\n"
    elif kind == "r8":
        p += "    v_lshrrev_b32 v4, 3, v3\n    v_and_b32 v3, 7, v3\n    v_lshlrev_b32 v3, 4, v3\n    v_lshl_add_u32 v3, v4, 10, v3\n"
    elif kind == "r4":
        p += "    v_lshrrev_b32 v4, 4, v3\n    v_and_b32 v3, 15, v3\n    v_lshlrev_b32 v3, 4, v3\n    v_lshl_add_u32 v3, v4, 10, v3\n"
    elif kind == "f32":
        p += "    v_lshrrev_b32 v4, 5, v3\n    v_and_b32 v3, 31, v3\n    v_lshlrev_b32 v3, 10, v3\n    v_lshl_add_u32 v3, v4, 4, v3\n"
    elif kind == "f16":
        p += "    v_lshrrev_b32 v4, 4, v3\n    v_and_b32 v3, 15, v3\n    v_lshlrev_b32 v3, 10, v3\n    v_lshl_add_u32 v3, v4, 4, v3\n"
    p += f"    s_mul_i32 s40, s2, 69632\n    s_lshl_b32 s41, s16, {dict(lin=13,r8=13,r4=13,f32=15,f16=14)[kind]}\n    s_add_u32 s40, s40, s41\n    s_and_b32 s40, s40, {REG-1}\n"
    p += f"    s_lshl_b32 s42, s16, 13\n"
    return p
def add(name, kind, lds, depth, U=8, iters=400, mod=""):
    b = ""
    step = {"lin": 1024, "r8": 128, "r4": 256, "f32": 32, "f16": 64}[kind]
    big = {"lin": 8192, "r8": 8192, "r4": 4096, "f32": 32768, "f16": 16384}[kind]
    for i in range(U):
        off = (i * step) % 1024 if kind != "lin" else 0
        if kind == "lin":
            b += f"    s_add_u32 s43, s40, {i*1024}\n"
        elif kind == "r4":
            b += f"    s_add_u32 s43, s40, {(i*step)%1024 + (i*step//1024)*4096}\n"
        else:
            b += f"    s_add_u32 s43, s40, {i*step}\n"
        if lds:
            b += f"    s_add_u32 m0, s42, {i*1024}\n    s_nop 0\n"
            b += f"    buffer_load_dwordx4 v3, s[8:11], s43 offen {mod} lds\n"
        else:
            b += f"    buffer_load_dwordx4 v[{8+4*(i%8)}:{11+4*(i%8)}], v3, s[8:11], s43 offen {mod}\n"
        b += f"    s_waitcnt vmcnt({depth})\n"
    adv = {"lin": 8192*NW, "r8": 8192*NW, "r4": 8192*NW, "f32": 256, "f16": 512}[kind]
    if kind in ("f32", "f16"):
        b += f"    s_add_u32 s40, s40, {adv}\n    s_and_b32 s44, s40, 1023\n    s_cmp_eq_u32 s44, 0\n    s_cselect_b32 s44, {big*NW - 1024}, 0\n    s_add_u32 s40, s40, s44\n    s_and_b32 s40, s40, {REG-1}\n"
    else:
        b += f"    s_add_u32 s40, s40, {adv}\n    s_and_b32 s40, s40, {REG-1}\n"
    ks.append(kernel(name, b, iters, nvgpr=64, block=BLK, pre=pat(kind))); names.append(name)
for kind in ("lin", "r8", "r4"):
    for d in (4, 8, 16, 32):
        add(f"lds_{kind}_d{d}", kind, True, d)
for kind in ("lin", "r8", "f32", "f16"):
    for d in (4, 8, 16, 32):
        add(f"reg_{kind}_d{d}", kind, False, d)
add("lds_lin_sc1_d16", "lin", True, 16, mod="sc1")
add("reg_lin_sc1_d16", "lin", False, 16, mod="sc1")
add("lds_lin_nt_d16", "lin", True, 16, mod="nt")
build("mb5_%d" % BLK, ks)
print(" ".join(names))
```

```python
from mbgen import *
import sys
BLK = int(sys.argv[1])
NW = BLK // 64
ks = []; names = []
def add(name, seg, mod="", depth=16, U=8, iters=400):
    lp = seg // 16
    rows = 64 // lp
    p = f"""    v_and_b32 v3, 63, v0
    v_lshrrev_b32 v4, {lp.bit_length()-1}, v3
    v_and_b32 v3, {lp-1}, v3
    v_lshlrev_b32 v3, 4, v3
    v_mul_u32_u24 v4, 3072, v4
    v_add_u32 v3, v3, v4
    s_lshr_b32 s40, s2, 3
    s_mul_i32 s40, s40, 37
    s_mul_i32 s41, s16, {rows}
    s_add_u32 s40, s40, s41
    s_lshl_b32 s42, s16, 13
    s_mov_b32 s45, 0
"""
    b = ""
    for i in range(U):
        b += f"    s_and_b32 s43, s40, 511\n    s_mul_i32 s43, s43, 3072\n    s_add_u32 s43, s43, s45\n"
        b += f"    s_add_u32 m0, s42, {i*1024}\n    s_add_u32 s40, s40, {rows*NW}\n"
        b += f"    buffer_load_dwordx4 v3, s[8:11], s43 offen {mod} lds\n    s_waitcnt vmcnt({depth})\n"
    b += "    s_add_u32 s45, s45, 128\n    s_cmp_ge_u32 s45, 2944\n    s_cselect_b32 s45, 0, s45\n"
    ks.append(kernel(name, b, iters, nvgpr=64, block=BLK, pre=p)); names.append(name)
for seg in (64, 128, 32):
    for tag, mod in (("def", ""), ("sc0", "sc0"), ("sc1", "sc1"), ("nt", "nt"), ("sc01", "sc0 sc1"), ("all", "sc0 sc1 nt")):
        add(f"s{seg}_{tag}", seg, mod)
build("mb13_%d" % BLK, ks)
print(" ".join(names))
```
